```python
import torch

def _softmax(x, axis=-1):
    return torch.softmax(x, dim=axis)
def _gelu(x):
    return torch.nn.functional.gelu(x, approximate="tanh")
def _silu(x):
    return torch.nn.functional.silu(x)
def _sigmoid(x):
    return torch.sigmoid(x)
def _layernorm(x, axis=-1, eps=1e-5):
    m = x.mean(dim=axis, keepdim=True)
    v = x.var(dim=axis, keepdim=True, unbiased=False)
    return (x - m) / torch.sqrt(v + eps)
def _scatter_add(tgt, idx, src, axis=0):
    return tgt.clone().index_add_(axis, idx, src)
def _segment_sum(src, seg, n):
    out = torch.zeros((n,) + src.shape[1:], dtype=src.dtype)
    return out.index_add_(0, seg, src)
def _pad(x, pw):
    flat = tuple(v for pair in reversed(pw) for v in pair)
    return torch.nn.functional.pad(x, flat)

kernel_name = 'parallel_sum__mha_block_cached__dense_activation_silu__decode'

def setup_inputs():

    _w = (lambda a: (lambda t: t.to(torch.bfloat16) if t.is_floating_point() else t)(torch.as_tensor(a)))
    def _A_setup():
        B, Sq, D = 8, 1, 512
        H, Sk, Dh = 32, 4096, 128
        return {
            "x": _w((lambda *s: torch.randn(*s, dtype=torch.bfloat16) * 0.05)(B, Sq, D)),
            "k_cache": _w((lambda *s: torch.randn(*s, dtype=torch.bfloat16) * 3.2)(B, H, Sk, Dh)),
            "v_cache": _w((lambda *s: torch.randn(*s, dtype=torch.bfloat16) * 0.8)(B, H, Sk, Dh)),
            "wq": _w((lambda *s: torch.randn(*s, dtype=torch.bfloat16) * 3.2)(D, H * Dh) * (D ** -0.5)),
            "wo": _w((lambda *s: torch.randn(*s, dtype=torch.bfloat16) * 0.8)(H * Dh, D) * ((H * Dh) ** -0.5)),
        }
    _A_in = _A_setup()

    def _B_setup():
        B, S, D, F = 8, 1, 512, 1792
        return {
            "x": _w((lambda *s: torch.randn(*s, dtype=torch.bfloat16) * 0.05)(B, S, D)),
            "w1": _w((lambda *s: torch.randn(*s, dtype=torch.bfloat16) * 3.2)(D, F) * (D ** -0.5)),
            "w2": _w((lambda *s: torch.randn(*s, dtype=torch.bfloat16) * 0.4)(F, D) * (F ** -0.5)),
        }
    _B_in = _B_setup()

    return {
        "A_x": _A_in["x"],
        "A_k_cache": _A_in["k_cache"],
        "A_v_cache": _A_in["v_cache"],
        "A_wq": _A_in["wq"],
        "A_wo": _A_in["wo"],
        "B_x": _B_in["x"],
        "B_w1": _B_in["w1"],
        "B_w2": _B_in["w2"],
    }

def reference(A_x, A_k_cache, A_v_cache, A_wq, A_wo, B_x, B_w1, B_w2):
    def _A_ref(x, k_cache, v_cache, wq, wo):
        B, Sq, D = x.shape
        H, Dh = 32, 128
        q = (lambda x, *d: x.permute(*d))((x @ wq).reshape(B, Sq, H, Dh), 0, 2, 1, 3)
        scores = torch.einsum("bhqd,bhkd->bhqk", q, k_cache) * (Dh ** -0.5)
        p = _softmax(scores, axis=-1)
        o = torch.einsum("bhqk,bhkd->bhqd", p, v_cache)
        return (lambda x, *d: x.permute(*d))(o, 0, 2, 1, 3).reshape(B, Sq, H * Dh) @ wo

    def _B_ref(x, w1, w2):
        h = torch.einsum("bsd,df->bsf", x, w1)
        h = _silu(h)
        out = torch.einsum("bsf,fd->bsd", h, w2)
        return out

    x = A_x
    xn = _layernorm(x, axis=-1)
    return x + _A_ref(xn, A_k_cache, A_v_cache, A_wq, A_wo) + _B_ref(xn, B_w1, B_w2)
```

```python
import argparse, os

NAME = "parallel_sum__mha_block_cached__dense_activation_silu__decode"
HEADER = open(os.path.join(os.path.dirname(os.path.abspath(__file__)), "header.txt")).read()

QBUF, HBUF, OBUF, MLBUF, PROG, LVL = 0, 2048, 4096, 6144, 6400, 7424
CTL = 0x80000
CSTR = 4352
DPPF = "row_mask:0xf bank_mask:0xf"

def gen(W=5, WF=7, HW=2, N1="2,2,11,11,19,19,27,27", gb="x073", NP=8, XB=2, pfw=5, PK=2,
        pm="573861049ab2", lv="4,5,6,7", th="-12,12,32", lag=32, padd=2, par=2,
        glob=1, goff=30, gcl=12, gsh=1, gw1=10, gw2=5, gsw=300, t0=40, t1=224, t2=464, hold=1, kc=1,
        stamps=0, pad=0, amp=0, prio=1, cpf=1, sdel=1, hfast=1, ll=0, old=0, abl=0, gpol="sc1", ppol="sc1", bfp=0, l0=-1, l1=-1, tz=8, xm=0, spol="nt"):
    lv = [int(x) for x in str(lv).split(",")]; th = [int(x) for x in str(th).split(",")]
    N1 = [int(x) for x in str(N1).split(",")]
    base = lv.index(W)
    if l0 < 0: l0 = base
    if l1 < 0: l1 = base
    L = []
    def A(s):
        for ln in s.split("\n"):
            ln = ln.strip()
            L.append(ln if ln.endswith(":") else "    " + ln)
    def C(s): L.append("    ; " + s)
    def stamp(k, *sets):
        if stamps and (not sets or stamps in sets): A(f"s_memrealtime s[{60+2*k}:{61+2*k}]")
    def stamp_store():
        if not stamps: return
        A("s_waitcnt lgkmcnt(0)")
        A("s_lshl_b32 s58, s2, 3\ns_add_u32 s58, s58, s3\ns_lshl_b32 s58, s58, 6\ns_add_u32 s58, s58, 0x1000000")
        A("s_getreg_b32 s59, hwreg(HW_REG_XCC_ID)")
        A("s_mov_b64 exec, 1")
        A("v_mov_b32 v1, s58")
        for k in range(8): A(f"v_mov_b32 v{2+k}, s{60+2*k}")
        A("v_mov_b32 v10, s59\nv_mov_b32 v11, s61")
        A("global_store_dwordx4 v1, v[2:5], s[24:25]")
        A("global_store_dwordx4 v1, v[6:9], s[24:25] offset:16")
        A("global_store_dwordx2 v1, v[10:11], s[24:25] offset:32")
    def xlane_ops(op, r, t):
        o = []
        for rot in (8, 4, 2, 1):
            o += ["s_nop 1", f"{op}_dpp v{r}, v{r}, v{r} row_ror:{rot} {DPPF}"]
        for sw in ("v_permlane16_swap_b32", "v_permlane32_swap_b32"):
            o += [f"v_mov_b32 v{t}, v{r}", "s_nop 1", f"{sw} v{t}, v{r}", f"{op} v{r}, v{r}, v{t}"]
        return o
    def xlane(op, r, t):
        for s in xlane_ops(op, r, t): A(s)
    def reduce_g(acc):
        for i in range(4): A(f"v_permlane32_swap_b32 v{acc+i}, v{acc+i+4}")
        for i in (2, 0): A(f"v_pk_add_f32 v[{acc+i}:{acc+i+1}], v[{acc+i}:{acc+i+1}], v[{acc+i+4}:{acc+i+5}]")
        A("s_nop 1")
        for i in range(2): A(f"v_permlane16_swap_b32 v{acc+i}, v{acc+i+2}")
        A(f"v_pk_add_f32 v[{acc}:{acc+1}], v[{acc}:{acc+1}], v[{acc+2}:{acc+3}]")

    if stamps:
        for k in range(1, 8): A(f"s_mov_b64 s[{60+2*k}:{61+2*k}], 0")
    stamp(0)
    if pad: A("s_memrealtime s[80:81]")
    if amp: A("s_memrealtime s[60:61]")
    A("s_load_dwordx16 s[4:19], s[0:1], 0")
    if stamps: A("s_load_dwordx2 s[24:25], s[0:1], 80")
    A("s_cmp_ge_u32 s2, 256\ns_cbranch_scc1 L_end")
    A("v_lshrrev_b32 v1, 6, v0")
    A("v_and_b32 v0, 63, v0")
    A("v_readfirstlane_b32 s3, v1")
    A("s_lshr_b32 s26, s2, 5")
    A("s_lshr_b32 s50, s2, 3")
    if xm:
        C("swap head bits 1 and 3: heads 2 MiB apart share DRAM rows, keep them on one XCD")
        A("s_lshr_b32 s27, s2, 2\ns_xor_b32 s27, s27, s2\ns_and_b32 s27, s27, 2\ns_mul_i32 s27, s27, 5\ns_xor_b32 s2, s2, s27")
    A("s_and_b32 s27, s2, 31")
    A("s_mov_b32 s31, 0x20000")
    A("s_cmp_lt_u32 s3, 4\ns_cbranch_scc1 L_stream")
    def ld2():
        A("s_load_dwordx4 s[20:23], s[0:1], 64")
        if not stamps: A("s_load_dwordx2 s[24:25], s[0:1], 80")
    if not hfast: ld2()
    A("s_cmp_eq_u32 s3, 8\ns_cbranch_scc1 L_ctrl")

    MU, XN = 4, 5
    HA = 8
    F = 16
    X = 24
    GT = 28
    BK, S0, S1, T1 = 32, 33, 34, 35
    GO, GX, GV = 36, 37, 38
    WR = 40
    GA = 40
    so = ["0", "s45", "s46", "s57"]
    A("s_sub_u32 s3, s3, 4")
    C("s52 < 4: this workgroup reduces 128 output columns of its batch (heads spread over the XCDs)")
    A("s_brev_b32 s52, s26\ns_lshr_b32 s52, s52, 27\ns_xor_b32 s52, s52, s27")
    A("v_lshrrev_b32 v3, 4, v0")
    A("v_and_b32 v2, 15, v0")
    A("s_lshl_b32 s38, s26, 10")
    A("v_lshl_add_u32 v6, v0, 4, s38")
    C("row order rotated by batch: the 8 workgroups sharing a slice miss on different rows")
    A("s_lshl_b32 s39, s26, 1")
    A("v_add_u32 v7, s39, v2\nv_and_b32 v7, 15, v7")
    A("v_lshl_add_u32 v7, v3, 4, v7")
    A("s_lshl_b32 s39, s3, 8\ns_add_u32 s38, s38, s39")
    A(f"v_lshl_add_u32 v{T1}, v7, 2, s38")
    A("s_lshl_b32 s39, s3, 2")
    A(f"v_add_u32 v{BK}, s39, v3")
    A(f"v_lshlrev_b32 v1, 18, v{BK}")
    A("v_lshl_add_u32 v1, v2, 4, v1")
    A("s_lshl_b32 s38, s27, 8")
    A("s_sub_u32 s30, 0x400000, s38")
    A("s_lshl_b32 s36, s26, 15")
    A("s_waitcnt lgkmcnt(0)")
    A("s_add_u32 s28, s10, s38\ns_addc_u32 s29, s11, 0")
    def qload(n):
        A(f"buffer_load_dwordx4 v[{WR+4*n}:{WR+4*n+3}], v1, s[28:31], s36 offen")
        if n < 31:
            A("s_add_u32 s36, s36, 0x2000")
            if n % 4 == 3: A("s_and_b32 s36, s36, 0x3ffff")
    A(f"global_load_dwordx4 v[{X}:{X+3}], v6, s[4:5]")
    A(f"global_load_dword v{XN}, v{T1}, s[4:5]")
    for n in range(4): qload(n)
    if sdel == 2: A("s_barrier")
    if hfast:
        ld2(); A("s_waitcnt lgkmcnt(0)")
    C("hand-off addressing; the reducing workgroups mark the slots they will read as empty")
    NG = 2 if bfp else 4
    if bfp:
        A("s_and_b32 s38, s27, 3\ns_lshl_b32 s39, s38, 2\ns_add_u32 s39, s39, s3")
        A("s_lshl_b32 s39, s39, 6\ns_lshl_b32 s47, s26, 15\ns_add_u32 s39, s39, s47")
        A("s_add_u32 s32, s24, s39\ns_addc_u32 s33, s25, 0")
        A("s_mov_b32 s34, 0x8000\ns_mov_b32 s35, 0x20000")
        A(f"v_lshrrev_b32 v{GV}, 2, v0\nv_lshlrev_b32 v{GV}, 10, v{GV}")
        A(f"v_and_b32 v{GO}, 3, v0")
        A(f"v_lshl_add_u32 v{GV}, v{GO}, 4, v{GV}")
        C("partials are bf16 pairs in lane order: column = 128j + 32*c4 + 8*g + 2w' + (lane>>3 & 1)")
        A(f"v_lshl_add_u32 v{GO}, v{GO}, 2, v3")
        A(f"v_bfe_u32 v{GT}, v0, 3, 1\nv_lshl_add_u32 v{GO}, v{GO}, 3, v{GT}")
        A("s_lshl_b32 s38, s38, 7\ns_lshl_b32 s47, s26, 9\ns_add_u32 s38, s38, s47")
        A("s_lshl_b32 s47, s3, 1\ns_add_u32 s38, s38, s47")
        A(f"v_add_lshl_u32 v{GO}, v{GO}, s38, 1")
        A("s_mov_b32 s45, 0x4000")
        A("s_cmp_ge_u32 s52, 4\ns_cbranch_scc1 L_noclr")
        for i in range(4): A(f"v_mov_b32 v{GT+i}, -1")
        for i in range(2): A(f"buffer_store_dwordx4 v[{GT}:{GT+3}], v{GV}, s[32:35], {so[i]} offen sc1")
    else:
        A("s_and_b32 s38, s27, 3\ns_lshl_b32 s39, s38, 2\ns_add_u32 s39, s39, s3")
        A("s_lshl_b32 s39, s39, 7\ns_lshl_b32 s47, s26, 16\ns_add_u32 s39, s39, s47")
        A("s_add_u32 s32, s24, s39\ns_addc_u32 s33, s25, 0")
        A("s_mov_b32 s34, 0x10000\ns_mov_b32 s35, 0x20000")
        A(f"v_lshrrev_b32 v{GV}, 3, v0\nv_lshlrev_b32 v{GV}, 11, v{GV}")
        A(f"v_and_b32 v{GO}, 7, v0")
        A(f"v_lshl_add_u32 v{GV}, v{GO}, 4, v{GV}")
        C("partials are stored in lane order: column = 128j + 16*c8 + 8*(g>>1) + 2w' + (g&1)")
        A(f"v_lshrrev_b32 v{GT}, 1, v3\nv_lshl_add_u32 v{GO}, v{GO}, 1, v{GT}")
        A(f"v_and_b32 v{GT}, 1, v3\nv_lshl_add_u32 v{GO}, v{GO}, 3, v{GT}")
        A("s_lshl_b32 s38, s38, 7\ns_lshl_b32 s47, s26, 9\ns_add_u32 s38, s38, s47")
        A("s_lshl_b32 s47, s3, 1\ns_add_u32 s38, s38, s47")
        A(f"v_add_lshl_u32 v{GO}, v{GO}, s38, 1")
        A("s_mov_b32 s45, 0x4000\ns_mov_b32 s46, 0x8000\ns_mov_b32 s57, 0xc000")
        A("s_cmp_ge_u32 s52, 4\ns_cbranch_scc1 L_noclr")
        for i in range(4): A(f"v_mov_b32 v{GT+i}, -1")
        for i in range(4): A(f"buffer_store_dwordx4 v[{GT}:{GT+3}], v{GV}, s[32:35], {so[i]} offen sc1")
    A("s_or_b32 s38, s52, s3\ns_cbranch_scc1 L_noclr")
    A(f"s_mul_i32 s38, s26, {CSTR}\ns_add_u32 s38, s38, {CTL}")
    A(f"v_lshl_add_u32 v{S0}, v0, 2, s38\nv_mov_b32 v{S1}, 0")
    A(f"global_store_dword v{S0}, v{S1}, s[24:25] sc1")
    if glob:
        A(f"v_add_u32 v{S0}, 0x10000, v{S0}")
        A(f"global_store_dword v{S0}, v{S1}, s[24:25] sc1")
    A("L_noclr:")
    A("s_mov_b32 s37, 0")
    A("s_mov_b32 s40, 0x05040100\ns_mov_b32 s41, 0x07060302")
    A("s_mov_b32 s44, 0xffff0000")
    C("layernorm with the reference's bf16 rounding steps")
    stamp(1, 6)
    A("s_waitcnt vmcnt(4)")
    stamp(2, 6)
    for i in range(4):
        A(f"v_lshlrev_b32 v{F+2*i}, 16, v{X+i}")
        A(f"v_and_b32 v{F+2*i+1}, s44, v{X+i}")
    A(f"v_add_f32 v{S0}, v{F}, v{F+1}")
    for i in range(2, 8): A(f"v_add_f32 v{S0}, v{S0}, v{F+i}")
    xlane("v_add_f32", S0, T1)
    A(f"v_mul_f32 v{S0}, 0x3b000000, v{S0}")
    for i in range(8): A(f"v_sub_f32 v{F+i}, v{F+i}, v{S0}")
    A(f"v_mul_f32 v{S1}, v{F}, v{F}")
    for i in range(1, 8): A(f"v_fmac_f32 v{S1}, v{F+i}, v{F+i}")
    xlane("v_add_f32", S1, T1)
    A(f"v_mul_f32 v{S1}, 0x3b000000, v{S1}")
    A(f"v_cvt_pk_bf16_f32 v{S0}, v{S0}, v{S1}")
    A(f"v_and_b32 v{S1}, s44, v{S0}")
    A(f"v_lshlrev_b32 v{S0}, 16, v{S0}")
    A(f"v_add_f32 v{S1}, 0x3727c5ac, v{S1}")
    A(f"v_cvt_pk_bf16_f32 v{S1}, v{S1}, v{S1}")
    A(f"v_and_b32 v{S1}, s44, v{S1}")
    A(f"v_sqrt_f32 v{S1}, v{S1}")
    A("s_nop 0")
    A(f"v_cvt_pk_bf16_f32 v{S1}, v{S1}, v{S1}")
    A(f"v_and_b32 v{S1}, s44, v{S1}")
    A(f"v_rcp_f32 v{S1}, v{S1}")
    A(f"v_lshlrev_b32 v{F}, 16, v{XN}")
    A(f"v_and_b32 v{F+1}, s44, v{XN}")
    A(f"v_sub_f32 v{F}, v{F}, v{S0}")
    A(f"v_sub_f32 v{F+1}, v{F+1}, v{S0}")
    A(f"v_cvt_pk_bf16_f32 v{F}, v{F}, v{F+1}")
    A(f"v_and_b32 v{F+1}, s44, v{F}")
    A(f"v_lshlrev_b32 v{F}, 16, v{F}")
    A(f"v_mul_f32 v{F}, v{F}, v{S1}")
    A(f"v_mul_f32 v{F+1}, v{F+1}, v{S1}")
    A(f"v_cvt_pk_bf16_f32 v{MU}, v{F}, v{F+1}")
    A("v_lshlrev_b32 v6, 5, v2")
    A("v_lshl_add_u32 v6, v3, 3, v6")
    A("s_lshl_b32 s38, s3, 9")
    A("v_add_u32 v6, s38, v6")
    A("v_lshlrev_b32 v7, 3, v7")
    for i in range(8): A(f"v_mov_b32 v{HA+i}, 0")
    C("rest of the wq slice in one burst while the streamers hold back")
    stamp(4, 6)
    A("s_barrier")
    stamp(5, 6)
    for n in range(4, 32): qload(n)
    stamp(7, 1); stamp(6, 6)
    A("s_barrier")
    stamp(1, 1)
    A("L_perm:")
    C("pair rows (2k,2k+1) into dot2 operands")
    free = WR - 1
    lo = {}; hi = {}
    for k in range(16):
        A(f"s_waitcnt vmcnt({30-2*k})")
        for i in range(4):
            a = WR + 8 * k + i; b = a + 4
            A(f"v_perm_b32 v{free}, v{b}, v{a}, s40")
            A(f"v_perm_b32 v{b}, v{b}, v{a}, s41")
            lo[k, i] = free; hi[k, i] = b; free = a
    A("s_cmp_lt_u32 s37, 2\ns_cbranch_scc1 L_dots")
    stamp(4, 1)
    A("s_barrier")
    stamp(5, 1)
    for w in (0, 2): A(f"ds_read2st64_b64 v[{F+2*w}:{F+2*w+3}], v7 offset0:{HBUF//512 + w} offset1:{HBUF//512 + w + 1}")
    A(f"s_waitcnt lgkmcnt({0 if stamps else 1})")
    A(f"v_pk_add_f32 v[{F}:{F+1}], v[{F}:{F+1}], v[{F+2}:{F+3}]")
    A("s_waitcnt lgkmcnt(0)")
    A(f"v_pk_add_f32 v[{F+4}:{F+5}], v[{F+4}:{F+5}], v[{F+6}:{F+7}]")
    A(f"v_pk_add_f32 v[{F}:{F+1}], v[{F}:{F+1}], v[{F+4}:{F+5}]")
    A(f"v_cvt_pk_bf16_f32 v{MU}, v{F}, v{F+1}")
    A("s_cmp_eq_u32 s37, 2\ns_cbranch_scc1 L_silu")
    A(".p2align 3")
    A("L_dots:")
    for k in range(16):
        for i in range(4):
            A(f"v_dot2c_f32_bf16_dpp v{HA+2*i}, v{MU}, v{lo[k,i]} row_newbcast:{k} {DPPF}")
            A(f"v_dot2c_f32_bf16_dpp v{HA+2*i+1}, v{MU}, v{hi[k,i]} row_newbcast:{k} {DPPF}")
    A("s_cmp_eq_u32 s37, 2\ns_cbranch_scc1 L_after2")
    reduce_g(HA)
    A("s_cmp_lt_u32 s37, 2\ns_cbranch_scc1 L_after01")
    C("pass 3: publish the partial (never the empty marker)")
    if bfp:
        A(f"v_cvt_pk_bf16_f32 v{HA}, v{HA}, v{HA+1}")
        A(f"v_min_u32 v{HA}, -2, v{HA}")
        A(f"global_store_dword v6, v{HA}, s[24:25] {ppol}")
    else:
        A(f"v_min_u32 v{HA}, -2, v{HA}\nv_min_u32 v{HA+1}, -2, v{HA+1}")
        A(f"global_store_dwordx2 v6, v[{HA}:{HA+1}], s[24:25] {ppol}")
    stamp(6, 1)
    A("s_cmp_ge_u32 s52, 4\ns_cbranch_scc1 L_hend")
    C("gather: sum 32 columns over the 32 heads, re-reading slots that are still empty;")
    C("reads may stay in flight: a slot only ever changes from the marker (a NaN) to its value")
    GR = F
    for i in range(NG):
        for k in range(4): A(f"v_mov_b32 v{GA+4*i+k}, -1")
        A(f"buffer_load_dwordx4 v[{GA+4*i}:{GA+4*i+3}], v{GV}, s[32:35], {so[i]} offen {gpol}")
    A("s_mov_b32 s56, 0\ns_mov_b32 s39, 0")
    A(f"v_lshlrev_b32 v{GX}, 16, v{GX}")
    A("L_poll:")
    A(f"s_waitcnt vmcnt({PK})")
    mk = [(48, 49), (50, 51), (54, 55), (58, 59)]
    for i in range(NG):
        A(f"v_max3_u32 v{GT+i}, v{GA+4*i}, v{GA+4*i+1}, v{GA+4*i+2}")
        A(f"v_max_u32 v{GT+i}, v{GT+i}, v{GA+4*i+3}")
        A(f"v_cmp_eq_u32 s[{mk[i][0]}:{mk[i][1]}], -1, v{GT+i}")
    A("s_or_b64 s[42:43], s[48:49], s[50:51]")
    if not bfp: A("s_or_b64 s[42:43], s[42:43], s[54:55]\ns_or_b64 s[42:43], s[42:43], s[58:59]")
    A("s_cbranch_scc1 L_again")
    A("L_pdone:")
    if bfp:
        U = GA + 8
        for r in range(4):
            A(f"v_lshlrev_b32 v{GR+2*r}, 16, v{GA+r}\nv_and_b32 v{GR+2*r+1}, s44, v{GA+r}")
        for r in range(4):
            A(f"v_lshlrev_b32 v{U+2*r}, 16, v{GA+4+r}\nv_and_b32 v{U+2*r+1}, s44, v{GA+4+r}")
        for r in range(0, 8, 2): A(f"v_pk_add_f32 v[{GR+r}:{GR+r+1}], v[{GR+r}:{GR+r+1}], v[{U+r}:{U+r+1}]")
        A("s_nop 0")
        for k in range(4): A(f"v_permlane32_swap_b32 v{GR+k}, v{GR+k+4}")
        for k in range(0, 4, 2): A(f"v_pk_add_f32 v[{GR+k}:{GR+k+1}], v[{GR+k}:{GR+k+1}], v[{GR+k+4}:{GR+k+5}]")
        A("s_nop 1")
        for k in range(2): A(f"v_permlane16_swap_b32 v{GR+k}, v{GR+k+2}")
        A(f"v_pk_add_f32 v[{GR}:{GR+1}], v[{GR}:{GR+1}], v[{GR+2}:{GR+3}]")
        A("s_nop 1")
        A(f"v_add_f32_dpp v{GR}, v{GR}, v{GR} row_ror:8 row_mask:0xf bank_mask:0x3")
        A(f"v_add_f32_dpp v{GR}, v{GR+1}, v{GR+1} row_ror:8 row_mask:0xf bank_mask:0xc")
        A("s_nop 1")
        A(f"v_add_f32_dpp v{GR}, v{GR}, v{GR} row_shl:4 row_mask:0xf bank_mask:0x5")
    else:
        pk = lambda d, a, b: A(f"v_pk_add_f32 v[{d}:{d+1}], v[{a}:{a+1}], v[{b}:{b+1}]")
        for k in (0, 2):
            pk(GR + k, GA + k, GA + 4 + k); pk(GR + 4 + k, GA + 8 + k, GA + 12 + k)
        for k in (0, 2): pk(GR + k, GR + k, GR + 4 + k)
        A("s_nop 1")
        for k in range(2): A(f"v_permlane32_swap_b32 v{GR+k}, v{GR+k+2}")
        pk(GR, GR, GR + 2)
        A("s_nop 1")
        A(f"v_permlane16_swap_b32 v{GR}, v{GR+1}")
        A(f"v_add_f32 v{GR}, v{GR}, v{GR+1}")
        A("s_nop 1")
        A(f"v_add_f32_dpp v{GR}, v{GR}, v{GR} row_ror:8 {DPPF}")
    A(f"v_cmp_u_f32 vcc, v{GR}, v{GR}")
    A(f"v_add_f32 v{GR}, v{GR}, v{GX}")
    A(f"v_cvt_pk_bf16_f32 v{GR}, v{GR}, v{GR}")
    A("s_cbranch_vccnz L_nan")
    A("L_store:")
    em = "0x0f0f0f0f" if bfp else "0x00ff00ff"
    A(f"s_mov_b32 exec_lo, {em}\ns_mov_b32 exec_hi, {em}")
    A(f"global_store_short v{GO}, v{GR}, s[20:21]")
    A("L_hend:")
    if amp:
        A("s_memrealtime s[62:63]\ns_waitcnt lgkmcnt(0)\ns_sub_u32 s64, s62, s60")
        A(f"s_min_u32 s64, s64, 9000\ns_max_u32 s64, s64, 7000\ns_sub_u32 s64, s64, 7000\ns_mul_i32 s64, s64, {amp}\ns_add_u32 s64, s64, 10000")
        A("L_ampl:\ns_memrealtime s[62:63]\ns_waitcnt lgkmcnt(0)\ns_sub_u32 s62, s62, s60\ns_cmp_lt_u32 s62, s64\ns_cbranch_scc1 L_ampl")
    if stamps:
        stamp(3)
        A("s_add_u32 s3, s3, 4")
        stamp_store()
    A("L_end:")
    A("s_endpgm")
    A("L_again:")
    for i in range(NG):
        A(f"s_mov_b64 exec, s[{mk[i][0]}:{mk[i][1]}]")
        A(f"s_cbranch_execz L_psk{i}")
        A(f"buffer_load_dwordx4 v[{GA+4*i}:{GA+4*i+3}], v{GV}, s[32:35], {so[i]} offen {gpol}")
        A(f"L_psk{i}:")
    A("s_mov_b64 exec, -1")
    A("s_mov_b32 s39, 0")
    A("s_add_u32 s56, s56, 1\ns_cmp_lt_u32 s56, 0x400000\ns_cbranch_scc1 L_poll")
    A("s_mov_b32 s39, 1")
    A("s_branch L_pdone")
    C("a NaN sum is final only if it came from settled registers")
    A("L_nan:")
    A("s_cmp_lg_u32 s39, 0\ns_cbranch_scc1 L_store")
    A("s_waitcnt vmcnt(0)")
    A("s_mov_b32 s39, 1")
    A("s_branch L_poll")
    A("L_silu:")
    A(f"v_and_b32 v{F+1}, s44, v{MU}")
    A(f"v_lshlrev_b32 v{F}, 16, v{MU}")
    for k in range(2): A(f"v_mul_f32 v{F+2+k}, 0xbfb8aa3b, v{F+k}")
    for k in range(2): A(f"v_exp_f32 v{F+2+k}, v{F+2+k}")
    A("s_nop 0")
    for k in range(2): A(f"v_add_f32 v{F+2+k}, 1.0, v{F+2+k}")
    for k in range(2): A(f"v_rcp_f32 v{F+2+k}, v{F+2+k}")
    A("s_nop 0")
    for k in range(2): A(f"v_mul_f32 v{F+k}, v{F+k}, v{F+2+k}")
    A(f"v_cvt_pk_bf16_f32 v{MU}, v{F}, v{F+1}")
    A("s_nop 0")
    A("s_branch L_dots")
    A("L_after2:")
    C("after pass 2: keep the FFN partial in the accumulators, set up wo")
    A(f"global_load_ushort v{GX}, v{GO}, s[4:5]")
    A(f"v_add_u32 v7, {OBUF - HBUF}, v7")
    A("s_lshl_b32 s38, s27, 17")
    A("s_add_u32 s28, s12, s38\ns_addc_u32 s29, s13, 0")
    A("s_mov_b32 s30, 0x20000")
    A("s_mov_b32 s37, 3")
    A("s_branch L_pass")
    A("L_after01:")
    A("s_cmp_eq_u32 s37, 1\ns_cbranch_scc1 L_after1")
    C("after pass 0: publish q partials, set up w1 (64 hidden units for heads < 28)")
    A(f"ds_write_b64 v6, v[{HA}:{HA+1}] offset:{QBUF}")
    A("s_waitcnt lgkmcnt(0)")
    stamp(2, 1); stamp(7, 6)
    A("s_barrier")
    C("all four waves' markers have landed: tell the publishers")
    A("s_cmp_ge_u32 s52, 4\ns_cbranch_scc1 L_noflag")
    A("s_cmp_lg_u32 s3, 0\ns_cbranch_scc1 L_noflag")
    A("s_lshl_b32 s38, s26, 2\ns_add_u32 s38, s38, s52\ns_lshl_b32 s38, s38, 2")
    A(f"v_mov_b32 v{T1}, s38\nv_mov_b32 v{S0}, 1")
    A("s_mov_b64 exec, 1")
    A(f"global_store_dword v{T1}, v{S0}, s[22:23] sc1")
    A("s_mov_b64 exec, -1")
    A("L_noflag:")
    A("s_lshl_b32 s38, s27, 7")
    A("s_add_u32 s28, s16, s38\ns_addc_u32 s29, s17, 0")
    A("s_sub_u32 s30, 1835008, s38")
    A("s_cmp_lt_u32 s27, 28\ns_cselect_b32 s30, s30, 0")
    A("s_mov_b32 s47, 3584")
    A("s_mov_b32 s38, 114688")
    A(f"v_mul_lo_u32 v1, v{BK}, s38")
    A("v_lshl_add_u32 v1, v2, 4, v1")
    A(f"v_and_b32 v{F}, 8, v2")
    A(f"v_lshl_add_u32 v1, v{F}, 24, v1")
    A("s_mov_b32 s37, 1")
    A("s_branch L_pass0")
    A("L_after1:")
    C("after pass 1: publish h partials, set up w2")
    A(f"ds_write_b64 v6, v[{HA}:{HA+1}] offset:{HBUF}")
    A(f"s_lshl_b32 s38, s2, {11-bfp}\ns_lshl_b32 s39, s3, {9-bfp}\ns_add_u32 s38, s38, s39")
    A(f"v_lshl_add_u32 v6, v0, {3-bfp}, s38")
    A("s_lshl_b32 s38, s27, 16")
    A("s_cmp_lt_u32 s27, 28\ns_cselect_b32 s30, 0x10000, 0\ns_cselect_b32 s38, s38, 0")
    A("s_add_u32 s28, s18, s38\ns_addc_u32 s29, s19, 0")
    A("s_mov_b32 s47, 1024")
    A("v_lshlrev_b32 v1, 15, v3")
    A("v_lshl_add_u32 v1, v2, 4, v1")
    A("s_lshl_b32 s38, s3, 8")
    A("v_add_u32 v1, s38, v1")
    A("s_mov_b32 s37, 2")
    A("s_waitcnt lgkmcnt(0)")
    A("L_pass0:")
    for i in range(8): A(f"v_mov_b32 v{HA+i}, 0")
    C("passes 1..3: weight loads, two in flight so the stream keeps its share of the L1 miss queue")
    A("L_pass:")
    if abl & 1: A("s_branch L_perm")
    if abl & 2: A("s_cmp_lt_u32 s37, 3\ns_cbranch_scc1 L_perm")
    A("s_lshl_b32 s38, s26, 2\ns_mul_i32 s36, s38, s47\ns_lshl_b32 s39, s47, 5")
    for n in range(32):
        if abl & 4 and n == 16: A("s_cmp_lt_u32 s37, 3\ns_cbranch_scc1 L_perm")
        A(f"s_waitcnt vmcnt({HW-1})")
        A(f"buffer_load_dwordx4 v[{WR+4*n}:{WR+4*n+3}], v1, s[28:31], s36 offen")
        if n < 31:
            A("s_add_u32 s36, s36, s47")
            if n % 4 == 3: A("s_cmp_eq_u32 s36, s39\ns_cselect_b32 s36, 0, s36")
    A("s_branch L_perm")

    cL, cS, cA, c0, c1, c2, c3, cB, cG = 1, 2, 3, 4, 5, 6, 7, 8, 9
    A("L_ctrl:")
    if sdel == 2: A("s_barrier")
    if hfast: ld2()
    if cpf:
        C("pull this kernel's code into L2 with the weights (each workgroup a 1 KiB piece)")
        A("s_getpc_b64 s[42:43]")
        A("L_pc:")
        A(f"s_sub_u32 s42, s42, L_pc-{NAME}_kernel\ns_subb_u32 s43, s43, 0")
        A("s_lshl_b32 s38, s50, 10")
        A(f"s_min_u32 s38, s38, L_codeend-{NAME}_kernel-1024")
        A("v_lshl_add_u32 v20, v0, 4, s38")
        A("global_load_dwordx4 v[16:19], v20, s[42:43]")
    A(f"v_lshlrev_b32 v{c0}, 4, v0\nv_mov_b32 v12, 0\nv_mov_b32 v13, 0\nv_mov_b32 v14, 0\nv_mov_b32 v15, 0")
    A(f"ds_write_b128 v{c0}, v[12:15] offset:{PROG}")
    A(f"v_and_b32 v{cA}, 3, v0\nv_lshlrev_b32 v{cA}, 8, v{cA}")
    A(f"v_mov_b32 v{c1}, {l1}")
    A(f"ds_write_b32 v{cA}, v{c1} offset:{LVL}")
    A("s_getreg_b32 s38, hwreg(HW_REG_XCC_ID)\ns_and_b32 s38, s38, 7")
    if par: A(f"s_bitcmp1_b32 s38, 0\ns_cselect_b32 s36, {lag-par}, {lag+par}")
    else: A(f"s_mov_b32 s36, {lag}")
    if ll: A(f"s_cmp_lt_u32 s2, 8\ns_cselect_b32 s39, {ll}, 0\ns_add_u32 s36, s36, s39")
    if old: A("v_mov_b32 v10, 0")
    A(f"s_mul_i32 s38, s38, {CSTR}\ns_add_u32 s38, s38, {CTL}")
    A(f"v_lshl_add_u32 v{cL}, v0, 2, s38")
    A("s_lshl_b32 s39, s50, 2\ns_add_u32 s39, s39, s38")
    A(f"v_mov_b32 v{cS}, s39")
    if glob:
        A(f"s_add_u32 s39, s38, 128\nv_mov_b32 v{cB}, s39")
        A(f"s_add_u32 s39, s38, 0x10000\nv_and_b32 v{cG}, 15, v0\nv_lshl_add_u32 v{cG}, v{cG}, 2, s39")
        A("s_mov_b32 s48, 99\ns_mov_b32 s49, 1")
        for r in range(92, 100): A(f"s_mov_b32 s{r}, {-goff}")
    A(f"s_mov_b32 s40, {4*t1}\ns_mov_b32 s41, 0")
    A("s_waitcnt lgkmcnt(0)")
    if glob: A(f"s_add_u32 s42, s24, {CTL + 0x10000}\ns_addc_u32 s43, s25, 0")
    A("s_barrier\ns_barrier\ns_barrier")
    if l1 != base:
        A("L_cz:")
        A(f"ds_read_b32 v{c1}, v{cA} offset:{PROG}")
        A("s_waitcnt lgkmcnt(0)")
        A(f"v_readfirstlane_b32 s39, v{c1}")
        A(f"s_cmp_lt_u32 s39, {tz}\ns_cbranch_scc1 L_cz")
        A(f"v_mov_b32 v{c1}, {base}")
        A(f"ds_write_b32 v{cA}, v{c1} offset:{LVL}")
    A("L_cw:")
    A(f"ds_read_b32 v{c1}, v{cA} offset:{PROG}")
    A("s_waitcnt lgkmcnt(0)")
    A(f"v_readfirstlane_b32 s39, v{c1}")
    A(f"s_cmp_lt_u32 s39, {t0}\ns_cbranch_scc1 L_cw")
    C("all 32 reducing workgroups must have marked their slots before this workgroup may publish (barrier below)")
    A(f"v_and_b32 v{c2}, 31, v0\nv_lshlrev_b32 v{c2}, 2, v{c2}")
    A("s_mov_b32 s44, 0")
    A("L_chk:")
    A(f"global_load_dword v{c0}, v{c2}, s[22:23] sc1")
    A("s_add_u32 s44, s44, 1\ns_cmp_ge_u32 s44, 0x100000\ns_cbranch_scc1 L_chkd")
    A("s_waitcnt vmcnt(0)")
    A(f"v_cmp_eq_u32 vcc, 0, v{c0}")
    A("s_cbranch_vccnz L_chk")
    A("L_chkd:")
    A("s_mov_b32 exec_hi, 15")
    C("compare each streamer's progress with the mean of the workgroups on this XCD")
    A("L_ctl:")
    A(f"global_load_dword v{c0}, v{cL}, s[24:25] sc1")
    if glob:
        A("s_cmp_lg_u32 s50, 0\ns_cbranch_scc1 L_nl1")
        for r in range(8): A(f"s_load_dword s{76+r}, s[42:43], {r*CSTR} glc")
        A("L_nl1:")
    A("s_waitcnt vmcnt(0) lgkmcnt(0)")
    A(f"ds_read_b32 v{c1}, v{cA} offset:{PROG}")
    A(f"v_cmp_eq_u32 vcc, 0, v{c0}")
    A(f"v_readlane_b32 s45, v{c0}, 32")
    for rot in (8, 4, 2, 1):
        A(f"s_nop 1\nv_add_u32_dpp v{c0}, v{c0}, v{c0} row_ror:{rot} {DPPF}")
    A("s_waitcnt lgkmcnt(0)")
    A(f"v_add_u32_dpp v{c2}, v{c1}, v{c1} quad_perm:[1,0,3,2] {DPPF}")
    if old:
        A(f"v_mov_b32 v{c3}, v10\nv_lshlrev_b32 v10, 2, v{c1}")
    else:
        A(f"v_lshlrev_b32 v{c3}, 2, v{c1}\ns_nop 0")
    A(f"v_add_u32_dpp v{c1}, v{c2}, v{c2} quad_perm:[2,3,0,1] {DPPF}")
    A(f"global_store_dword v{cS}, v{c1}, s[24:25]")
    A(f"v_readfirstlane_b32 s39, v{c1}")
    A(f"v_readlane_b32 s38, v{c0}, 0\nv_readlane_b32 s47, v{c0}, 16")
    A("s_cmp_lg_u32 vcc_lo, 0\ns_cbranch_scc1 L_ctls")
    A("s_sub_u32 s41, s41, 1\ns_cmp_ge_i32 s41, 0\ns_cbranch_scc1 L_ctls")
    A("s_add_u32 s38, s38, s47\ns_lshr_b32 s56, s38, 5")
    A("s_add_u32 s38, s56, s36\ns_add_u32 s38, s38, s45")
    A(f"v_sub_u32 v{c3}, s38, v{c3}")
    A(f"v_mov_b32 v{c0}, 0")
    for t in th: A(f"v_cmp_le_i32 vcc, {t}, v{c3}\ns_nop 1\nv_addc_co_u32 v{c0}, vcc, 0, v{c0}, vcc")
    A(f"ds_write_b32 v{cA}, v{c0} offset:{LVL}")
    if glob:
        C("one workgroup per XCD also posts the XCD mean now and then, and turns the others' posts into a bias:")
        C("each XCD's lead over this one is taken at the moment its post is seen to change")
        A("s_cmp_lg_u32 s50, 0\ns_cbranch_scc1 L_ctls")
        A(f"s_cmp_lt_u32 s39, {4*gsw}\ns_cselect_b32 s47, {gw1}, {gw2}")
        A("s_add_u32 s48, s48, 1\ns_cmp_lt_u32 s48, s47\ns_cbranch_scc1 L_nl2")
        A("s_mov_b32 s48, 0")
        A(f"v_mov_b32 v{c2}, s56")
        A(f"global_store_dword v{cG}, v{c2}, s[24:25] sc1")
        A("L_nl2:")
        A("s_cmp_eq_u32 s49, 0\ns_cbranch_scc1 L_nf")
        for r in range(0, 8, 2): A(f"s_mov_b64 s[{84+r}:{85+r}], s[{76+r}:{77+r}]")
        A("s_mov_b32 s49, 0")
        A("L_nf:")
        A(f"s_mov_b32 s38, {8*goff}")
        for r in range(8):
            A(f"s_sub_u32 s47, s{76+r}, s56\ns_cmp_lg_u32 s{76+r}, s{84+r}\ns_cselect_b32 s{92+r}, s47, s{92+r}\ns_mov_b32 s{84+r}, s{76+r}")
            A(f"s_add_u32 s38, s38, s{92+r}")
        A(f"s_ashr_i32 s38, s38, {3+gsh}")
        A(f"s_min_i32 s38, s38, {gcl}\ns_max_i32 s38, s38, {-gcl}")
        A(f"v_mov_b32 v{c3}, s38")
        A(f"global_store_dword v{cB}, v{c3}, s[24:25]")
    A("L_ctls:")
    A("s_cmp_lt_u32 s39, s40\ns_cbranch_scc1 L_ctl")
    A(f"s_cmp_eq_u32 s40, {4*t2}\ns_cbranch_scc1 L_end")
    A(f"s_mov_b32 s40, {4*t2}\ns_mov_b32 s41, {hold}")
    if glob: A("s_mov_b32 s49, 1")
    A("s_barrier")
    A("s_branch L_ctl")

    vOff = 1
    Q = 4
    P = 4
    SC = 8
    AA = 16
    ACC = 16
    TMP = 32
    PA, PC, PL = 36, 37, 38
    RING = 40
    def slot(j): return RING + 4 * j
    QB = [int(c, 16) + 8 for c in str(pm).lstrip("x")]
    assert sorted(QB) == list(range(8, 20))
    lasthi = [None]
    def sload(m, s):
        c = sum(((m >> k) & 1) << QB[4 + k] for k in range(5))
        o, hi_ = c & 0xfff, c & ~0xfff
        if m % 8 == 0: lasthi[0] = None
        if hi_ == 0: so_ = "s51"
        else:
            if hi_ != lasthi[0]: A(f"s_add_u32 s36, s51, {hi_:#x}")
            lasthi[0] = hi_; so_ = "s36"
        A(f"buffer_load_dwordx4 v[{slot(s)}:{slot(s)+3}], v{vOff}, s[28:31], {so_} offen" + (f" offset:{o}" if o else "") + " " + spol)
    def setbase(k0):
        A("s_add_u32 s52, s37, 1")
        for k in range(k0, 8):
            A(f"s_bfe_u32 s53, s52, {(1 << 16) | (k - k0):#x}")
            if k == k0: A(f"s_lshl_b32 s51, s53, {QB[4+k]}")
            else: A(f"s_lshl_b32 s53, s53, {QB[4+k]}\ns_or_b32 s51, s51, s53")
    A("L_stream:")
    if prio: A(f"s_setprio {prio}")
    C("first touch of this head's w1 / w2 / wo slices (1/8 each): all weight traffic in one burst, data discarded")
    A("s_lshl_b32 s52, s26, 2\ns_add_u32 s52, s52, s3\ns_mul_i32 s52, s52, 57344\ns_lshl_b32 s53, s27, 7\ns_add_u32 s52, s52, s53")
    A("v_lshrrev_b32 v3, 3, v0\nv_mul_u32_u24 v3, 3584, v3\nv_and_b32 v2, 7, v0\nv_lshl_add_u32 v3, v2, 4, v3\nv_add_u32 v3, s52, v3")
    A("v_add_u32 v4, 28672, v3")
    A("s_lshl_b32 s52, s27, 3\ns_add_u32 s52, s52, s26\ns_lshl_b32 s52, s52, 2\ns_add_u32 s52, s52, s3")
    A("s_lshl_b32 s53, s52, 11\nv_lshl_add_u32 v5, v0, 4, s53")
    A("s_lshl_b32 s53, s52, 12\nv_lshl_add_u32 v6, v0, 4, s53")
    sites = sorted(set(N1))
    npf = [0]
    def pl(v, b_, o):
        if npf[0] >= pfw: A(f"s_waitcnt vmcnt({pfw-1})")
        d = AA + 4 * (npf[0] % 4); npf[0] += 1
        A(f"global_load_dwordx4 v[{d}:{d+3}], v{v}, {b_}" + (f" offset:{o}" if o else ""))
    def setup():
        C("K / V addressing: the key order is a bit permutation chosen for DRAM row locality")
        A(f"s_and_b32 s38, s3, 1\ns_lshl_b32 s38, s38, {QB[2]}\ns_lshr_b32 s39, s3, 1\ns_lshl_b32 s39, s39, {QB[3]}\ns_or_b32 s38, s38, s39")
        A(f"v_and_b32 v2, 15, v0\nv_lshl_add_u32 v{vOff}, v2, 4, s38")
        A(f"v_bfe_u32 v7, v0, 4, 1\nv_lshl_add_u32 v{vOff}, v7, {QB[0]}, v{vOff}")
        A(f"v_bfe_u32 v7, v0, 5, 1\nv_lshl_add_u32 v{vOff}, v7, {QB[1]}, v{vOff}")
        A("v_lshlrev_b32 v2, 5, v2")
        A("s_lshl_b32 s38, s2, 20")
        A("s_add_u32 s28, s6, s38\ns_addc_u32 s29, s7, 0")
        A("s_add_u32 s8, s8, s38\ns_addc_u32 s9, s9, 0")
        A("s_mov_b32 s30, 0x100000")
        A("s_mov_b32 s51, 0\ns_mov_b32 s37, 0")
        if len(sites) > 1:
            tab = sum(v << (8 * i) for i, v in enumerate(N1))
            A(f"s_mov_b32 s48, {tab & 0xffffffff:#x}\ns_mov_b32 s49, {tab >> 32:#x}")
            for i, c in enumerate(str(gb).lstrip("x")):
                A(f"s_bfe_u32 s53, s2, {(1 << 16) | int(c):#x}")
                if i == 0: A("s_lshl_b32 s39, s53, 3")
                else: A(f"s_lshl_b32 s53, s53, {3+i}\ns_or_b32 s39, s39, s53")
            A("s_lshr_b64 s[48:49], s[48:49], s39\ns_and_b32 s48, s48, 0xff")
        A("s_mov_b32 s40, 0xcccccccc\ns_mov_b32 s41, 0xcccccccc")
        A("s_mov_b32 s42, 0xaaaaaaaa\ns_mov_b32 s43, 0xaaaaaaaa")
        A("s_mov_b32 s44, 0xffff0000")
        A("s_mov_b32 s45, 0x3db504f3")
        A("s_mov_b32 s46, 0x3fb8aa3b")
        A(f"s_lshl_b32 s38, s3, 8\nv_lshl_add_u32 v{PA}, v0, 2, s38\nv_mov_b32 v{PC}, {padd}")
    A("s_waitcnt lgkmcnt(0)")
    if sdel: setup()
    if sdel == 2: A("s_barrier")
    A("s_cmp_ge_u32 s27, 28")
    A("s_cbranch_scc1 L_pf2")
    pl(3, "s[16:17]", 0); pl(4, "s[16:17]", 0); pl(5, "s[18:19]", 0); pl(5, "s[18:19]", 1024)
    A("L_pf2:")
    pl(6, "s[12:13]", 0)
    if not sdel: setup()
    for i in range(1, 4): pl(6, "s[12:13]", 1024 * i)
    stamp(1, 6)
    C("fill the ring (loads 0..31); the barrier pair hands the memory pipe to the helpers for their wq burst,")
    C("at a different point for each quarter of the workgroups")
    for m in range(32):
        if m in sites:
            if len(sites) > 1: A(f"s_cmp_lg_u32 s48, {m}\ns_cbranch_scc1 L_nb{m}")
            A("s_barrier\ns_barrier")
            if len(sites) > 1: A(f"L_nb{m}:")
        A(f"s_waitcnt vmcnt({WF-1})")
        if m == WF: stamp(7, 1)
        if m in (6, 14, 22): stamp({6: 2, 14: 3, 22: 4}[m], 6)
        sload(m, m)
    stamp(1, 1); stamp(5, 6)
    A("s_barrier")
    C("q = bf16(sum of the four helper partials); lane (g,c) keeps q[8c..8c+7]")
    dst = [(AA, AA + 4), (AA + 8, AA + 12), (SC, SC + 4), (Q, TMP)]
    for w in range(4):
        A(f"ds_read_b128 v[{dst[w][0]}:{dst[w][0]+3}], v2 offset:{QBUF + w*512}")
        A(f"ds_read_b128 v[{dst[w][1]}:{dst[w][1]+3}], v2 offset:{QBUF + w*512 + 16}")
    A(f"s_mov_b32 s48, {l0}")
    A(f"s_waitcnt lgkmcnt({0 if stamps else 4})")
    for i in range(8): A(f"v_add_f32 v{AA+i}, v{AA+i}, v{AA+8+i}")
    A("s_waitcnt lgkmcnt(0)")
    for i in range(8): A(f"v_add_f32 v{SC+i}, v{SC+i}, v{(Q if i < 4 else TMP) + i % 4}")
    for i in range(8): A(f"v_add_f32 v{AA+i}, v{AA+i}, v{SC+i}")
    for i in range(4): A(f"v_cvt_pk_bf16_f32 v{Q+i}, v{AA+2*i}, v{AA+2*i+1}")
    stamp(2, 1); stamp(6, 6)

    def reduce16_ops(d):
        a = lambda n: AA + n
        o = []
        for n in range(8): o.append(f"v_add_f32_dpp v{a(n)}, v{a(n)}, v{a(n)} row_ror:8 row_mask:0xf bank_mask:0x3")
        for n in range(8): o.append(f"v_add_f32_dpp v{a(n)}, v{a(n+8)}, v{a(n+8)} row_ror:8 row_mask:0xf bank_mask:0xc")
        for n in range(4): o.append(f"v_add_f32_dpp v{a(n)}, v{a(n)}, v{a(n)} row_shl:4 row_mask:0xf bank_mask:0x5")
        for n in range(4): o.append(f"v_add_f32_dpp v{a(n)}, v{a(n+4)}, v{a(n+4)} row_shr:4 row_mask:0xf bank_mask:0xa")
        for n in range(4):
            o.append(f"v_add_f32_dpp v{a(n)}, v{a(n)}, v{a(n)} quad_perm:[2,3,0,1] {DPPF}")
        o.append(f"v_cndmask_b32 v{a(0)}, v{a(0)}, v{a(2)}, s[40:41]")
        o.append(f"v_cndmask_b32 v{a(1)}, v{a(1)}, v{a(3)}, s[40:41]")
        o.append("s_nop 0")
        o.append(f"v_add_f32_dpp v{a(0)}, v{a(0)}, v{a(0)} quad_perm:[1,0,3,2] {DPPF}")
        o.append(f"v_add_f32_dpp v{a(1)}, v{a(1)}, v{a(1)} quad_perm:[1,0,3,2] {DPPF}")
        o.append(f"v_cndmask_b32 v{d}, v{a(0)}, v{a(1)}, s[42:43]")
        return o
    def kdots(j):
        s = slot(j); a = AA + j % 16
        A(f"v_dot2_f32_bf16 v{a}, v{s}, v{Q}, 0")
        for i in range(1, 4): A(f"v_dot2_f32_bf16 v{a}, v{s+i}, v{Q+i}, v{a}")
    def vdots(j):
        s = slot(j)
        for i in range(4):
            A(f"v_dot2c_f32_bf16_dpp v{ACC+2*i}, v{P}, v{s+i} row_newbcast:{j} {DPPF}")
            A(f"v_dot2c_f32_bf16_dpp v{ACC+2*i+1}, v{P+1}, v{s+i} row_newbcast:{j} {DPPF}")
    def score_ops():
        o = [f"v_cvt_pk_bf16_f32 v{TMP}, v{TMP}, v{TMP+1}"]
        o += [f"v_mov_b32 v{SC+i}, v{SC+i+1}" for i in range(7)]
        o += [f"v_and_b32 v{TMP+1}, s44, v{TMP}", f"v_lshlrev_b32 v{TMP}, 16, v{TMP}",
              f"v_mul_f32 v{TMP+1}, s45, v{TMP+1}", f"v_mul_f32 v{TMP}, s45, v{TMP}",
              f"v_cvt_pk_bf16_f32 v{SC+7}, v{TMP}, v{TMP+1}"]
        return o
    others = [i for i in range(len(lv)) if i != base]
    def seg(tag, sg, i, dots):
        A(f"L_{tag}{sg}_{i}:")
        for j in range(8 * sg, 8 * sg + 8):
            dots(j)
            A(f"s_waitcnt vmcnt({lv[i]-1})")
            sload(j, j)
            if j % padd == 0: A(f"ds_add_u32 v{PA}, v{PC} offset:{PROG}")
            if j % 8 == 6: A(f"ds_read_b32 v{PL}, v{PA} offset:{LVL}")
        A("s_waitcnt lgkmcnt(0)")
        A(f"v_readfirstlane_b32 s48, v{PL}")
    def disp(tag, sg):
        for i in others: A(f"s_cmp_eq_u32 s48, {i}\ns_cbranch_scc1 L_{tag}{sg}_{i}")
    WMAX = max(lv)

    C("K loop: 7 iterations x 32 loads (128 keys); scores = bf16(bf16(q.k) * 128^-0.5), two tiles per register")
    A("L_kloop:")
    setbase(5)
    for sg in range(4):
        if kc: disp("k", sg)
        seg("k", sg, base, kdots)
        A(f"L_kj{sg}:")
        if sg == 1:
            for s in reduce16_ops(TMP): A(s)
        if sg == 3:
            for s in reduce16_ops(TMP + 1) + score_ops(): A(s)
    if stamps == 6:
        A("s_cmp_lg_u32 s37, 0\ns_cbranch_scc1 L_st7"); stamp(7); A("L_st7:")
    if stamps == 5:
        for it, k in ((0, 1), (3, 2)):
            A(f"s_cmp_lg_u32 s37, {it}\ns_cbranch_scc1 L_st{k}"); stamp(k); A(f"L_st{k}:")
    A("s_add_u32 s37, s37, 1\ns_cmp_lt_u32 s37, 7\ns_cbranch_scc1 L_kloop")
    stamp(3, 1, 5)

    C("last K iteration + softmax, with the first 16 V loads spread through them")
    A("s_mov_b32 s28, s8\ns_mov_b32 s29, s9\ns_mov_b32 s51, 0")
    nv = [0]
    def vissue(win):
        m = nv[0]
        A(f"s_waitcnt vmcnt({win-1})")
        sload(m, m)
        if m % padd == 0: A(f"ds_add_u32 v{PA}, v{PC} offset:{PROG}")
        nv[0] += 1
    at = [((k + 1) * 32) // (NP + 1) for k in range(NP)]
    for j in range(32):
        need = (31 - j) + nv[0]
        if need < WMAX: A(f"s_waitcnt vmcnt({need})")
        kdots(j)
        while nv[0] < NP and at[nv[0]] <= j and nv[0] <= j: vissue(W)
        if j == 15:
            for s in reduce16_ops(TMP): A(s)
    M, Lr, T0, G = TMP, TMP + 1, TMP + 2, TMP + 3
    R = SC
    pre = reduce16_ops(TMP + 1) + score_ops()
    for i in range(8):
        pre += [f"v_lshlrev_b32 v{AA+2*i}, 16, v{SC+i}", f"v_and_b32 v{AA+2*i+1}, s44, v{SC+i}"]
    pre.append(f"v_max_f32 v{M}, v{AA}, v{AA+1}")
    pre += [f"v_max3_f32 v{M}, v{M}, v{AA+2*i}, v{AA+2*i+1}" for i in range(1, 8)]
    pre += xlane_ops("v_max_f32", M, T0)
    pre += [f"v_sub_f32 v{AA+i}, v{AA+i}, v{M}" for i in range(16)]
    pre += [f"v_mul_f32 v{AA+i}, s46, v{AA+i}" for i in range(16)]
    pre += [f"v_exp_f32 v{AA+i}, v{AA+i}" for i in range(16)]
    pre.append(f"v_add_f32 v{Lr}, v{AA}, v{AA+1}")
    pre += [f"v_add_f32 v{Lr}, v{Lr}, v{AA+i}" for i in range(2, 16)]
    pre += xlane_ops("v_add_f32", Lr, T0)
    pre += ["s_lshl_b32 s38, s3, 3", f"v_mov_b32 v{T0}, s38", f"ds_write_b64 v{T0}, v[{M}:{Lr}] offset:{MLBUF}", f"v_mov_b32 v{T0}, 0"]
    post = [f"ds_read_b128 v[{R}:{R+3}], v{T0} offset:{MLBUF}", f"ds_read_b128 v[{R+4}:{R+7}], v{T0} offset:{MLBUF+16}",
            "v_lshrrev_b32 v3, 4, v0", "v_lshl_add_u32 v2, v3, 3, v2", "s_lshl_b32 s38, s3, 9", "v_add_u32 v2, s38, v2",
            "s_waitcnt lgkmcnt(0)",
            f"v_max3_f32 v{G}, v{R}, v{R+2}, v{R+4}", f"v_max_f32 v{G}, v{G}, v{R+6}"]
    rs = (R, R + 2, R + 4, R + 6, M)
    post += [f"v_sub_f32 v{r}, v{r}, v{G}" for r in rs]
    post += [f"v_mul_f32 v{r}, s46, v{r}" for r in rs]
    post += [f"v_exp_f32 v{r}, v{r}" for r in rs]
    post.append(f"v_mul_f32 v{Lr}, v{R}, v{R+1}")
    post += [f"v_fmac_f32 v{Lr}, v{R+k}, v{R+k+1}" for k in (2, 4, 6)]
    post += [f"v_rcp_f32 v{Lr}, v{Lr}", "s_nop 0", f"v_mul_f32 v{M}, v{M}, v{Lr}"]
    post += [f"v_mul_f32 v{AA+i}, v{M}, v{AA+i}" for i in range(16)]
    post += [f"v_cvt_pk_bf16_f32 v{SC+i}, v{AA+2*i}, v{AA+2*i+1}" for i in range(8)]
    post += [f"v_mov_b32 v{ACC+i}, 0" for i in range(8)]
    npost = 2
    npre = 16 - NP - XB - npost
    assert npre >= 0 and t1 <= 224 + 14 - 2
    def spread(ops, n):
        pts = [((k + 1) * len(ops)) // (n + 1) for k in range(n)]
        for i, s in enumerate(ops):
            while pts and pts[0] <= i:
                pts.pop(0); vissue(W)
            A(s)
    spread(pre, npre)
    for k in range(XB): vissue(W + k + 1)
    A("s_waitcnt lgkmcnt(0)")
    A("s_barrier")
    spread(post, npost)
    assert nv[0] == 16
    A(f"s_mov_b32 s37, 0\ns_mov_b32 s48, {base}")
    stamp(4, 1)

    def vhead():
        A(f"v_and_b32 v{P}, 0xffff, v{SC}")
        A(f"v_lshlrev_b32 v{P+1}, 16, v{SC}")
    C("V loop: 15 tiles of 16 loads (64 keys), then the last tile with exact waits")
    A("L_vloop:")
    setbase(4)
    vhead()
    for i in range(7): A(f"v_alignbit_b32 v{SC+i}, v{SC+i+1}, v{SC+i}, 16")
    A(f"v_lshrrev_b32 v{SC+7}, 16, v{SC+7}")
    for sg in range(2):
        disp("v", sg)
        seg("v", sg, base, vdots)
        A(f"L_vj{sg}:")
    if stamps == 5:
        for it, k in ((0, 4), (6, 7), (12, 6)):
            A(f"s_cmp_lg_u32 s37, {it}\ns_cbranch_scc1 L_st{k}"); stamp(k); A(f"L_st{k}:")
    A("s_add_u32 s37, s37, 1\ns_cmp_lt_u32 s37, 15\ns_cbranch_scc1 L_vloop")
    vhead()
    A("s_nop 0")
    for j in range(16):
        if 15 - j < WMAX: A(f"s_waitcnt vmcnt({15-j})")
        vdots(j)
    stamp(5, 1, 5)
    reduce_g(ACC)
    A(f"ds_write_b64 v2, v[{ACC}:{ACC+1}] offset:{OBUF}")
    A("s_waitcnt lgkmcnt(0)")
    A("s_barrier")
    stamp(6, 1)
    stamp_store()
    if pad:
        A("L_padl:\ns_memrealtime s[82:83]\ns_waitcnt lgkmcnt(0)\ns_sub_u32 s82, s82, s80")
        A(f"s_cmp_lt_u32 s82, {pad*100}\ns_cbranch_scc1 L_padl")
    A("s_endpgm")
    C("the same eight-step segments with the other load windows")
    for i in others:
        for sg in range(2):
            seg("v", sg, i, vdots); A(f"s_branch L_vj{sg}")
    if kc:
        for i in others:
            for sg in range(4):
                seg("k", sg, i, kdots); A(f"s_branch L_kj{sg}")

    A("L_codeend:")
    nvg = 168
    out = HEADER + "; @launch grid=(256,1,1) block=(576,1,1) lds=8704\n"
    out += '.amdgcn_target "amdgcn-amd-amdhsa--gfx950"\n.text\n'
    out += f".globl {NAME}_kernel\n.p2align 8\n.type {NAME}_kernel,@function\n{NAME}_kernel:\n"
    out += "\n".join(L) + "\n"
    out += f""".section .rodata,"a"
.p2align 6
.amdhsa_kernel {NAME}_kernel
  .amdhsa_next_free_vgpr {nvg}
  .amdhsa_next_free_sgpr 102
  .amdhsa_accum_offset {nvg}
  .amdhsa_group_segment_fixed_size 0
  .amdhsa_kernarg_size 88
  .amdhsa_user_sgpr_count 2
  .amdhsa_user_sgpr_kernarg_segment_ptr 1
  .amdhsa_system_sgpr_workgroup_id_x 1
  .amdhsa_float_denorm_mode_32 3
.end_amdhsa_kernel
"""
    return out

if __name__ == "__main__":
    ap = argparse.ArgumentParser()
    ap.add_argument("out")
    ap.add_argument("kv", nargs="*")
    a = ap.parse_args()
    kw = {}
    for s in a.kv:
        k, v = s.split("=")
        kw[k] = int(v) if v.lstrip("-").isdigit() else v.replace("+", " ")
    open(a.out, "w").write(gen(**kw))
```
